```python
import torch

def _softmax(x, axis=-1):
    return torch.softmax(x, dim=axis)
def _gelu(x):
    return torch.nn.functional.gelu(x, approximate="tanh")
def _silu(x):
    return torch.nn.functional.silu(x)
def _sigmoid(x):
    return torch.sigmoid(x)
def _layernorm(x, axis=-1, eps=1e-5):
    m = x.mean(dim=axis, keepdim=True)
    v = x.var(dim=axis, keepdim=True, unbiased=False)
    return (x - m) / torch.sqrt(v + eps)
def _scatter_add(tgt, idx, src, axis=0):
    return tgt.clone().index_add_(axis, idx, src)
def _segment_sum(src, seg, n):
    out = torch.zeros((n,) + src.shape[1:], dtype=src.dtype)
    return out.index_add_(0, seg, src)
def _pad(x, pw):
    flat = tuple(v for pair in reversed(pw) for v in pair)
    return torch.nn.functional.pad(x, flat)

kernel_name = 'standalone__weight_only_int_quip__sampling'

def setup_inputs():

    _w = (lambda a: (lambda t: t.to(torch.bfloat16) if t.is_floating_point() else t)(torch.as_tensor(a)))
    B, S, D, F = 32, 8, 1024, 3584
    G = -1 if -1 > 0 else D
    D = (D // G) * G
    ng = D // G
    bits = 3 if 3 > 0 else 4
    qmax = 1 << bits
    qw = torch.randint(0, qmax, (D, F)).to(torch.int32)
    U, _ = (lambda *_a, **_k: torch.linalg.qr(*[torch.as_tensor(_x).float() for _x in _a], **_k))((lambda *s: torch.randn(*s, dtype=torch.bfloat16) * 0.05)(D, D))
    V, _ = (lambda *_a, **_k: torch.linalg.qr(*[torch.as_tensor(_x).float() for _x in _a], **_k))((lambda *s: torch.randn(*s, dtype=torch.bfloat16) * 0.05)(F, F))
    return {
        "x": _w((lambda *s: torch.randn(*s, dtype=torch.bfloat16) * 0.05)(B, S, D)),
        "qw": _w(qw),
        "scales": _w(torch.abs((lambda *s: torch.randn(*s, dtype=torch.bfloat16) * 0.05)(ng, F)) * 0.02 + 0.005),
        "zeros": _w(torch.full((ng, F), qmax / 2.0, dtype=float)),
        "U": _w(U.to(float)),
        "V": _w(V.to(float)),
    }

def reference(x, qw, scales, zeros, U, V):
    B, S, D = x.shape
    ng, F = scales.shape
    G = D // ng
    s = (lambda x, n, axis: torch.repeat_interleave(x, n, dim=axis))(scales, G, axis=0)
    z = (lambda x, n, axis: torch.repeat_interleave(x, n, dim=axis))(zeros, G, axis=0)
    wq = ((lambda x, dt: x.to(dt))(qw, x.dtype) - z) * s
    xr = torch.einsum("bsd,de->bse", x, U)
    h  = torch.einsum("bse,ef->bsf", xr, wq)
    y  = torch.einsum("bsf,fg->bsg", h, V)
    return y
```

```python
import sys
out = []
def E(s): out.append(s)

HDR = open('standalone__weight_only_int_quip__sampling.s.ref').read().split('\n')
hdr = [l for l in HDR if l.startswith(';') and '@launch' not in l and 'Override' not in l and 'grid=ceil' not in l]

XR_OFF = 0
H_OFF = 1 << 20

def gemm(name, kind, N, K, MT, act, outp):
    ntile = N // 64
    mtile = 256 // (16 * MT)
    nwg = ntile * mtile
    KQ = K // 4
    steps = KQ // 32
    wb = 2 if kind == 'bf16' else 4
    E(f".globl {name}")
    E(".p2align 8")
    E(f".type {name},@function")
    E(f"{name}:")
    E(f"  s_cmp_ge_u32 s2, {nwg}")
    E(f"  s_cbranch_scc1 {name}_done")
    woff = {'U': 32, 'qw': 8, 'V': 40}[name.split('_')[0]]
    E(f"  s_load_dwordx2 s[4:5], s[0:1], {woff}")
    E(f"  s_load_dwordx2 s[6:7], s[0:1], {act[0]}")
    E(f"  s_load_dwordx2 s[8:9], s[0:1], {outp[0]}")
    E(f"  s_load_dwordx4 s[28:31], s[0:1], 16")
    assert mtile & (mtile - 1) == 0
    lg = mtile.bit_length() - 1
    E(f"  s_and_b32 s10, s2, {mtile-1}")
    E(f"  s_lshr_b32 s11, s2, {lg}")
    E("  v_and_b32 v1, 63, v0")
    E("  v_lshrrev_b32 v2, 6, v0")
    E("  v_and_b32 v3, 15, v1")
    E("  v_lshrrev_b32 v4, 4, v1")
    E("  s_waitcnt lgkmcnt(0)")
    E("  s_mov_b32 s12, s4"); E("  s_mov_b32 s13, s5"); E(f"  s_mov_b32 s14, {K*N*wb}"); E("  s_mov_b32 s15, 0x20000")
    E(f"  s_add_u32 s16, s6, {act[1]}"); E("  s_addc_u32 s17, s7, 0"); E(f"  s_mov_b32 s18, {act[2]}"); E("  s_mov_b32 s19, 0x20000")
    E(f"  s_add_u32 s20, s8, {outp[1]}"); E("  s_addc_u32 s21, s9, 0"); E(f"  s_mov_b32 s22, {outp[2]}"); E("  s_mov_b32 s23, 0x20000")
    E(f"  v_mul_u32_u24 v5, {KQ}, v2")
    E("  v_lshl_add_u32 v5, v4, 3, v5")
    E(f"  s_mov_b32 s24, {N*wb}")
    E("  v_mul_lo_u32 v6, v5, s24")
    E(f"  s_lshl_b32 s25, s11, 6")
    E("  v_lshl_add_u32 v7, v3, 2, s25")
    E(f"  v_lshlrev_b32 v8, {wb.bit_length()-1}, v7")
    E("  v_add_u32 v6, v6, v8")
    E(f"  s_mul_i32 s26, s10, {16*MT}")
    E("  v_add_u32 v9, s26, v3")
    E(f"  s_mov_b32 s27, {K*2}")
    E("  v_mul_lo_u32 v9, v9, s27")
    E("  v_lshl_add_u32 v9, v5, 1, v9")
    if kind == 'int':
        E("  s_mov_b32 s36, s28"); E("  s_mov_b32 s37, s29"); E(f"  s_mov_b32 s38, {N*2}"); E("  s_mov_b32 s39, 0x20000")
        E("  s_mov_b32 s40, s30"); E("  s_mov_b32 s41, s31"); E(f"  s_mov_b32 s42, {N*2}"); E("  s_mov_b32 s43, 0x20000")
        E("  v_lshlrev_b32 v10, 1, v7")
        E("  buffer_load_dwordx2 v[12:13], v10, s[36:39], 0 offen")
        E("  buffer_load_dwordx2 v[14:15], v10, s[40:43], 0 offen")
        E("  s_waitcnt vmcnt(0)")
        E("  v_lshlrev_b32 v16, 16, v12"); E("  v_and_b32 v17, 0xffff0000, v12")
        E("  v_lshlrev_b32 v18, 16, v13"); E("  v_and_b32 v19, 0xffff0000, v13")
        E("  v_lshlrev_b32 v20, 16, v14"); E("  v_and_b32 v21, 0xffff0000, v14")
        E("  v_lshlrev_b32 v22, 16, v15"); E("  v_and_b32 v23, 0xffff0000, v15")
    E("  s_mov_b32 s32, 0x05040100")
    E("  s_mov_b32 s33, 0x07060302")
    ACC = 64
    WR = 128
    AR = 160
    FR = 176
    for r in range(MT * 16):
        E(f"  v_mov_b32 v{ACC+r}, 0")
    E("  s_mov_b32 s34, 0")
    E("  s_mov_b32 s35, 0")
    E("  s_mov_b32 s44, 0")
    E(f"{name}_loop:")
    lw = 2 if kind == 'bf16' else 4
    for t in range(8):
        E(f"  s_add_u32 s45, s35, {t*N*wb}")
        E(f"  buffer_load_dwordx{lw} v[{WR+t*lw}:{WR+t*lw+lw-1}], v6, s[12:15], s45 offen")
    for t in range(MT):
        E(f"  s_add_u32 s45, s44, {t*16*K*2}")
        E(f"  buffer_load_dwordx4 v[{AR+t*4}:{AR+t*4+3}], v9, s[16:19], s45 offen")
    E("  s_waitcnt vmcnt(0)")
    if kind == 'bf16':
        for j in range(4):
            for u in range(4):
                sel = 's32' if j % 2 == 0 else 's33'
                E(f"  v_perm_b32 v{FR+j*4+u}, v{WR+(2*u+1)*2+j//2}, v{WR+(2*u)*2+j//2}, {sel}")
    else:
        for j in range(4):
            for u in range(4):
                a = WR + (2*u)*4 + j; b = WR + (2*u+1)*4 + j
                E(f"  v_cvt_f32_i32 v{a}, v{a}")
                E(f"  v_cvt_f32_i32 v{b}, v{b}")
                E(f"  v_cvt_pk_bf16_f32 v24, v{a}, v{b}")
                E(f"  v_lshlrev_b32 v{a}, 16, v24")
                E(f"  v_and_b32 v{b}, 0xffff0000, v24")
                E(f"  v_sub_f32 v{a}, v{a}, v{20+j}")
                E(f"  v_sub_f32 v{b}, v{b}, v{20+j}")
                E(f"  v_cvt_pk_bf16_f32 v24, v{a}, v{b}")
                E(f"  v_lshlrev_b32 v{a}, 16, v24")
                E(f"  v_and_b32 v{b}, 0xffff0000, v24")
                E(f"  v_mul_f32 v{a}, v{a}, v{16+j}")
                E(f"  v_mul_f32 v{b}, v{b}, v{16+j}")
                E(f"  v_cvt_pk_bf16_f32 v{FR+j*4+u}, v{a}, v{b}")
    E("  s_nop 1")
    for t in range(MT):
        for j in range(4):
            c = ACC + t*16 + j*4
            E(f"  v_mfma_f32_16x16x32_bf16 v[{c}:{c+3}], v[{FR+j*4}:{FR+j*4+3}], v[{AR+t*4}:{AR+t*4+3}], v[{c}:{c+3}]")
    E(f"  s_add_u32 s35, s35, {32*N*wb}")
    E(f"  s_add_u32 s44, s44, 64")
    E("  s_add_u32 s34, s34, 1")
    E(f"  s_cmp_lt_u32 s34, {steps}")
    E(f"  s_cbranch_scc1 {name}_loop")
    E("  s_nop 15")
    assert MT == 4
    E("  v_lshlrev_b32 v25, 4, v1")
    E("  v_lshl_add_u32 v26, v2, 14, v25")
    for q in range(16):
        E(f"  ds_write_b128 v26, v[{ACC+q*4}:{ACC+q*4+3}] offset:{q*1024}")
    E("  s_waitcnt lgkmcnt(0)")
    E("  s_barrier")
    E("  v_lshl_add_u32 v27, v2, 12, v25")
    for w in range(4):
        for j in range(4):
            r = 128 + w*16 + j*4
            E(f"  ds_read_b128 v[{r}:{r+3}], v27 offset:{w*16384 + j*1024}")
    E("  s_waitcnt lgkmcnt(0)")
    for e in range(16):
        E(f"  v_add_f32 v{128+e}, v{128+e}, v{144+e}")
        E(f"  v_add_f32 v{160+e}, v{160+e}, v{176+e}")
        E(f"  v_add_f32 v{128+e}, v{128+e}, v{160+e}")
    for r in range(4):
        E(f"  v_cvt_pk_bf16_f32 v{200+2*r}, v{128+0*4+r}, v{128+1*4+r}")
        E(f"  v_cvt_pk_bf16_f32 v{201+2*r}, v{128+2*4+r}, v{128+3*4+r}")
    E("  v_lshl_add_u32 v28, v2, 4, v3")
    E("  v_add_u32 v28, s26, v28")
    E(f"  s_mov_b32 s46, {N*2}")
    E("  v_mul_lo_u32 v28, v28, s46")
    E("  v_lshl_add_u32 v29, v4, 4, s25")
    E("  v_lshl_add_u32 v28, v29, 1, v28")
    E("  buffer_store_dwordx4 v[200:203], v28, s[20:23], 0 offen")
    E("  buffer_store_dwordx4 v[204:207], v28, s[20:23], 0 offen offset:16")
    E(f"{name}_done:")
    E("  s_endpgm")
    return nwg

E('\n'.join(hdr))
E("; @launch kernel=U_kernel grid=(64,1,1) block=(256,1,1) lds=65536")
E("; @launch kernel=qw_kernel grid=(224,1,1) block=(256,1,1) lds=65536")
E("; @launch kernel=V_kernel grid=(224,1,1) block=(256,1,1) lds=65536")
E('.amdgcn_target "amdgcn-amd-amdhsa--gfx950"')
E(".text")
n1 = gemm('U_kernel', 'bf16', 1024, 1024, 4, (0, 0, 256*1024*2), (64, XR_OFF, 256*1024*2))
n2 = gemm('qw_kernel', 'int', 3584, 1024, 4, (64, XR_OFF, 256*1024*2), (64, H_OFF, 256*3584*2))
n3 = gemm('V_kernel', 'bf16', 3584, 3584, 4, (64, H_OFF, 256*3584*2), (48, 0, 256*3584*2))
assert (n1, n2, n3) == (64, 224, 224)
E('.section .rodata,"a"')
for k in ['U_kernel', 'qw_kernel', 'V_kernel']:
    E(".p2align 6")
    E(f""".amdhsa_kernel {k}
  .amdhsa_next_free_vgpr 256
  .amdhsa_next_free_sgpr 102
  .amdhsa_accum_offset 256
  .amdhsa_group_segment_fixed_size 0
  .amdhsa_kernarg_size 72
  .amdhsa_user_sgpr_count 2
  .amdhsa_user_sgpr_kernarg_segment_ptr 1
  .amdhsa_system_sgpr_workgroup_id_x 1
.end_amdhsa_kernel""")
open(sys.argv[1], 'w').write('\n'.join(out) + '\n')
```

```python
HDR = open('standalone__weight_only_int_quip__sampling.s.ref').read().split('\n')
hdr = '\n'.join([l for l in HDR if l.startswith(';') and '@launch' not in l and 'Override' not in l and 'grid=ceil' not in l])
KN = "standalone__weight_only_int_quip__sampling_kernel"
def wrap(body, grid=256, block=256, lds=0, vgpr=256, accum=256, sgpr=102):
    return f"""{hdr}
; @launch grid=({grid},1,1) block=({block},1,1) lds={lds}
.amdgcn_target "amdgcn-amd-amdhsa--gfx950"
.text
.globl {KN}
.p2align 8
.type {KN},@function
{KN}:
{body}
  s_endpgm
.section .rodata,"a"
.p2align 6
.amdhsa_kernel {KN}
  .amdhsa_next_free_vgpr {vgpr}
  .amdhsa_next_free_sgpr {sgpr}
  .amdhsa_accum_offset {accum}
  .amdhsa_group_segment_fixed_size 0
  .amdhsa_kernarg_size 72
  .amdhsa_user_sgpr_count 2
  .amdhsa_user_sgpr_kernarg_segment_ptr 1
  .amdhsa_system_sgpr_workgroup_id_x 1
.end_amdhsa_kernel
"""
def wrap_list(kernels):
    s = hdr + '\n'
    for (n, b, g, bl, lds, vg, ac) in kernels:
        s += f"; @launch kernel={n} grid=({g},1,1) block=({bl},1,1) lds={lds}\n"
    s += '.amdgcn_target "amdgcn-amd-amdhsa--gfx950"\n.text\n'
    seen = set()
    for (n, b, g, bl, lds, vg, ac) in kernels:
        if n in seen: continue
        seen.add(n)
        s += f".globl {n}\n.p2align 8\n.type {n},@function\n{n}:\n{b}\n  s_endpgm\n"
    s += '.section .rodata,"a"\n'
    seen = set()
    for (n, b, g, bl, lds, vg, ac) in kernels:
        if n in seen: continue
        seen.add(n)
        s += f""".p2align 6
.amdhsa_kernel {n}
  .amdhsa_next_free_vgpr {vg}
  .amdhsa_next_free_sgpr 102
  .amdhsa_accum_offset {ac}
  .amdhsa_group_segment_fixed_size 0
  .amdhsa_kernarg_size 72
  .amdhsa_user_sgpr_count 2
  .amdhsa_user_sgpr_kernarg_segment_ptr 1
  .amdhsa_system_sgpr_workgroup_id_x 1
.end_amdhsa_kernel
"""
    return s
```

```python
from common import *
import sys
STOFF = 0x8000000
def stamp(i):
    return f"  s_memrealtime s[{60+2*i}:{61+2*i}]\n"
def store_stamps(n, per_wave=8):
    s = "  s_waitcnt lgkmcnt(0) vmcnt(0)\n"
    s += "  s_load_dwordx2 s[50:51], s[0:1], 64\n  s_waitcnt lgkmcnt(0)\n"
    s += f"  s_add_u32 s52, s50, {STOFF}\n  s_addc_u32 s53, s51, 0\n  s_mov_b32 s54, 0x1000000\n  s_mov_b32 s55, 0x20000\n"
    s += "  v_lshrrev_b32 v1, 6, v0\n  s_lshl_b32 s56, s2, 2\n  v_add_u32 v1, s56, v1\n"
    s += f"  v_mul_u32_u24 v1, {per_wave*8}, v1\n"
    s += "  v_and_b32 v2, 63, v0\n  v_cmp_eq_u32 vcc, 0, v2\n  s_and_saveexec_b64 s[58:59], vcc\n"
    for i in range(n):
        s += f"  v_mov_b32 v2, s{60+2*i}\n  v_mov_b32 v3, s{61+2*i}\n  buffer_store_dwordx2 v[2:3], v1, s[52:55], 0 offen offset:{i*8}\n"
    s += "  s_waitcnt vmcnt(0)\n"
    return s

def m1(pattern, flags=""):
    b = stamp(0)
    b += "  s_load_dwordx2 s[4:5], s[0:1], 40\n  s_load_dwordx2 s[6:7], s[0:1], 8\n"
    b += "  v_and_b32 v1, 63, v0\n  v_lshrrev_b32 v2, 6, v0\n"
    b += "  s_waitcnt lgkmcnt(0)\n"
    b += f"  s_mov_b32 s8, s4\n  s_mov_b32 s9, s5\n  s_mov_b32 s10, {3584*3584*2}\n  s_mov_b32 s11, 0x20000\n"
    b += f"  s_mov_b32 s12, s6\n  s_mov_b32 s13, s7\n  s_mov_b32 s14, {1024*3584*4}\n  s_mov_b32 s15, 0x20000\n"
    if pattern == 'contig':
        b += f"  s_mul_i32 s16, s2, {100352}\n  v_mul_u32_u24 v3, {24*1024}, v2\n  v_lshl_add_u32 v3, v1, 4, v3\n"
        b += f"  s_mul_i32 s17, s2, {57344}\n  v_mul_u32_u24 v4, {14*1024}, v2\n  v_lshl_add_u32 v4, v1, 4, v4\n"
        vs = [i*1024 for i in range(24)]
        qs = [i*1024 for i in range(14)]
    else:
        b += "  s_mul_i32 s18, s2, 2341\n  s_lshr_b32 s18, s18, 16\n"
        b += "  s_mul_i32 s19, s18, 28\n  s_sub_u32 s19, s2, s19\n"
        b += "  s_and_b32 s18, s18, 7\n"
        b += f"  s_mul_i32 s16, s18, {448*7168}\n  s_lshl_b32 s20, s19, 8\n  s_add_u32 s16, s16, s20\n"
        b += f"  v_lshrrev_b32 v5, 4, v1\n  v_mul_u32_u24 v3, 112, v2\n  v_add_u32 v3, v3, v5\n  v_mul_u32_u24 v3, 7168, v3\n  v_and_b32 v5, 15, v1\n  v_lshl_add_u32 v3, v5, 4, v3\n"
        vs = [i*4*7168 for i in range(24)]
        b += "  s_mul_i32 s18, s2, 1171\n  s_lshr_b32 s18, s18, 16\n"
        b += "  s_mul_i32 s19, s18, 56\n  s_sub_u32 s19, s2, s19\n"
        b += "  s_and_b32 s18, s18, 3\n"
        b += f"  s_mul_i32 s17, s18, {256*14336}\n  s_lshl_b32 s20, s19, 8\n  s_add_u32 s17, s17, s20\n"
        b += f"  v_lshrrev_b32 v5, 4, v1\n  v_mul_u32_u24 v4, 56, v2\n  v_add_u32 v4, v4, v5\n  v_mul_u32_u24 v4, 14336, v4\n  v_and_b32 v5, 15, v1\n  v_lshl_add_u32 v4, v5, 4, v4\n"
        qs = [i*4*14336 for i in range(14)]
    r = 8
    for i, o in enumerate(qs):
        b += f"  s_add_u32 s21, s17, {o}\n  buffer_load_dwordx4 v[{r}:{r+3}], v4, s[12:15], s21 offen {flags}\n"; r += 4
    for i, o in enumerate(vs):
        b += f"  s_add_u32 s21, s16, {o}\n  buffer_load_dwordx4 v[{r}:{r+3}], v3, s[8:11], s21 offen {flags}\n"; r += 4
    b += stamp(1)
    b += "  s_waitcnt vmcnt(37)\n" + stamp(2)
    b += "  s_waitcnt vmcnt(24)\n" + stamp(3)
    b += "  s_waitcnt vmcnt(12)\n" + stamp(4)
    b += "  s_waitcnt vmcnt(0)\n" + stamp(5)
    b += store_stamps(6)
    return b
if __name__ == '__main__':
    open('m1_contig.s','w').write(wrap(m1('contig'), grid=256, lds=131072))
    open('m1_tile.s','w').write(wrap(m1('tile'), grid=256, lds=131072))
    open('m1_tile_nt.s','w').write(wrap(m1('tile', 'nt'), grid=256, lds=131072))
```

```python
from common import *
from gen_m1 import stamp, STOFF
def store_stamps(n, nw, per_wave=8):
    s = "  s_waitcnt lgkmcnt(0) vmcnt(0)\n"
    s += "  s_load_dwordx2 s[50:51], s[0:1], 64\n  s_waitcnt lgkmcnt(0)\n"
    s += f"  s_add_u32 s52, s50, {STOFF}\n  s_addc_u32 s53, s51, 0\n  s_mov_b32 s54, 0x1000000\n  s_mov_b32 s55, 0x20000\n"
    s += f"  v_lshrrev_b32 v1, 6, v0\n  s_mul_i32 s56, s2, {nw}\n  v_add_u32 v1, s56, v1\n"
    s += f"  v_mul_u32_u24 v1, {per_wave*8}, v1\n"
    s += "  v_and_b32 v2, 63, v0\n  v_cmp_eq_u32 vcc, 0, v2\n  s_and_saveexec_b64 s[58:59], vcc\n"
    for i in range(n):
        s += f"  v_mov_b32 v2, s{60+2*i}\n  v_mov_b32 v3, s{61+2*i}\n  buffer_store_dwordx2 v[2:3], v1, s[52:55], 0 offen offset:{i*8}\n"
    s += "  s_waitcnt vmcnt(0)\n"
    return s
def m2(nw, kb_per_wg, wg_stride, flags="", lds=False, passes=1, wgmask=None):
    nload = kb_per_wg // nw
    b = stamp(0)
    b += "  s_load_dwordx2 s[4:5], s[0:1], 40\n"
    b += "  v_and_b32 v1, 63, v0\n  v_lshrrev_b32 v2, 6, v0\n"
    b += "  s_nop 0\n  v_readfirstlane_b32 s30, v2\n"
    b += "  s_waitcnt lgkmcnt(0)\n"
    b += f"  s_mov_b32 s8, s4\n  s_mov_b32 s9, s5\n  s_mov_b32 s10, {3584*3584*2}\n  s_mov_b32 s11, 0x20000\n"
    if wgmask is not None:
        b += f"  s_and_b32 s3, s2, {wgmask}\n"
    else:
        b += "  s_mov_b32 s3, s2\n"
    b += f"  s_mul_i32 s16, s3, {wg_stride}\n  v_mul_u32_u24 v3, {nload*1024}, v2\n  v_lshl_add_u32 v3, v1, 4, v3\n"
    nreg = min(nload, 56)
    for p in range(passes):
        for i in range(nload):
            r = 8 + (i % nreg) * 4
            b += f"  s_add_u32 s21, s16, {i*1024}\n"
            if lds:
                b += f"  s_lshl_b32 s31, s30, 13\n  s_add_u32 s31, s31, {(i % 8)*1024}\n  s_mov_b32 m0, s31\n  s_nop 0\n"
                b += f"  buffer_load_dwordx4 v3, s[8:11], s21 offen {flags} lds\n"
            else:
                b += f"  buffer_load_dwordx4 v[{r}:{r+3}], v3, s[8:11], s21 offen {flags}\n"
            if i == 0 and p == 0:
                pass
        b += stamp(1 + 2*p)
        b += "  s_waitcnt vmcnt(0)\n" + stamp(2 + 2*p)
        if passes > 1:
            b += "  s_barrier\n"
    b += store_stamps(1 + 2*passes, nw)
    return b
if __name__ == '__main__':
    for nw in (4, 8, 16):
        vg = 256 if nw <= 8 else 128
        if nw == 16:
            kb = 256
        open(f'm2_w{nw}.s','w').write(wrap(m2(nw, 224 if nw==4 else 256, 256*1024, 'nt'), grid=32, block=64*nw, lds=131072, vgpr=vg, accum=vg))
        open(f'm2_w{nw}_lds.s','w').write(wrap(m2(nw, 224 if nw==4 else 256, 256*1024, 'nt', lds=True), grid=32, block=64*nw, lds=131072, vgpr=vg, accum=vg))
    for nw in (4, 8, 16):
        vg = 256 if nw <= 8 else 128
        open(f'm2_l2_w{nw}.s','w').write(wrap(m2(nw, 224 if nw==4 else 256, 256*1024, '', passes=3, wgmask=7), grid=256, block=64*nw, lds=131072, vgpr=vg, accum=vg))
        open(f'm2_l2nt_w{nw}.s','w').write(wrap(m2(nw, 224 if nw==4 else 256, 256*1024, 'nt', passes=3, wgmask=7), grid=256, block=64*nw, lds=131072, vgpr=vg, accum=vg))
        open(f'm2_l2_w{nw}_lds.s','w').write(wrap(m2(nw, 224 if nw==4 else 256, 256*1024, '', lds=True, passes=3, wgmask=7), grid=256, block=64*nw, lds=131072, vgpr=vg, accum=vg))
```

```python
from common import *
from gen_m1 import stamp, STOFF
from gen_m2 import store_stamps
def m6(kb, nw=4):
    n = kb * 1024 // 8
    b = stamp(0)
    b += "  s_mov_b32 s40, 0\n"
    b += "L_top:\n"
    for q in range(2):
        for i in range(n // 2):
            b += f"  v_add3_u32 v{8 + (i % 16)}, v{8 + (i % 16)}, v1, v2\n"
        b += "  s_cmp_eq_u32 s40, 0\n"
        b += f"  s_cbranch_scc0 L_s{q}\n" + stamp(1+q) + f"  s_branch L_t{q}\nL_s{q}:\n" + stamp(3+q) + f"L_t{q}:\n"
    b += "  s_add_u32 s40, s40, 1\n  s_cmp_lt_u32 s40, 2\n  s_cbranch_scc1 L_top\n"
    b += store_stamps(5, nw)
    return b
if __name__ == '__main__':
    for kb in (8, 32):
        open(f'm6_{kb}.s','w').write(wrap(m6(kb), grid=256, block=256, lds=131072, vgpr=128, accum=128))
```

```python
from common import *
from gen_m1 import stamp, STOFF
from gen_m2 import store_stamps
def m5(nw, kb, mode, flags="", stride=128, wg_stride=100352):
    b = stamp(0)
    b += "  s_load_dwordx2 s[4:5], s[0:1], 40\n"
    b += "  v_and_b32 v1, 63, v0\n  v_lshrrev_b32 v2, 6, v0\n"
    b += "  s_nop 0\n  v_readfirstlane_b32 s30, v2\n"
    b += "  s_waitcnt lgkmcnt(0)\n"
    b += f"  s_mov_b32 s8, s4\n  s_mov_b32 s9, s5\n  s_mov_b32 s10, {3584*3584*2}\n  s_mov_b32 s11, 0x20000\n"
    b += f"  s_mul_i32 s16, s2, {wg_stride}\n"
    per_wave = kb * 1024 // nw
    if mode == 'vec':
        n = per_wave // (64 * stride)
        b += f"  v_mul_u32_u24 v3, {per_wave}, v2\n  v_mul_u32_u24 v4, {stride}, v1\n  v_add_u32 v3, v3, v4\n"
        for i in range(n):
            b += f"  s_add_u32 s21, s16, {i*64*stride}\n  buffer_load_dword v{8+i}, v3, s[8:11], s21 offen {flags}\n"
        b += stamp(1)
        b += "  s_waitcnt vmcnt(0)\n" + stamp(2)
    elif mode == 'sca':
        n = per_wave // stride
        b += f"  s_mul_i32 s17, s30, {per_wave}\n  s_add_u32 s17, s17, s16\n"
        for i in range(n):
            b += f"  s_buffer_load_dword s{80 + (i % 12)}, s[8:11], s17 {flags}\n  s_add_u32 s17, s17, {stride}\n"
        b += stamp(1)
        b += "  s_waitcnt lgkmcnt(0)\n" + stamp(2)
    elif mode == 'none':
        b += stamp(1) + stamp(2)
    b += "  s_waitcnt lgkmcnt(0)\n  s_barrier\n" + stamp(3)
    nl = per_wave // 1024
    b += f"  v_mul_u32_u24 v3, {per_wave}, v2\n  v_lshl_add_u32 v3, v1, 4, v3\n"
    for i in range(nl):
        b += f"  s_add_u32 s21, s16, {i*1024}\n  buffer_load_dwordx4 v[{8+4*(i%28)}:{11+4*(i%28)}], v3, s[8:11], s21 offen\n"
    b += "  s_waitcnt vmcnt(0)\n" + stamp(4)
    b += store_stamps(5, nw)
    return b
if __name__ == '__main__':
    W = lambda n, body, g, nw: open(n,'w').write(wrap(body, grid=g, block=64*nw, lds=131072, vgpr=128, accum=128))
    for g in (32, 256):
        W(f'm5_none_{g}.s', m5(4, 96, 'none'), g, 4)
        W(f'm5_vec_{g}.s', m5(4, 96, 'vec', ''), g, 4)
        W(f'm5_vecsc_{g}.s', m5(4, 96, 'vec', 'sc1'), g, 4)
        W(f'm5_vec64_{g}.s', m5(4, 96, 'vec', '', stride=64), g, 4)
        W(f'm5_sca4_{g}.s', m5(4, 96, 'sca'), g, 4)
        W(f'm5_sca16_{g}.s', m5(16, 96, 'sca'), g, 16)
```
